```python
import torch

def _softmax(x, axis=-1):
    return torch.softmax(x, dim=axis)
def _gelu(x):
    return torch.nn.functional.gelu(x, approximate="tanh")
def _silu(x):
    return torch.nn.functional.silu(x)
def _sigmoid(x):
    return torch.sigmoid(x)
def _layernorm(x, axis=-1, eps=1e-5):
    m = x.mean(dim=axis, keepdim=True)
    v = x.var(dim=axis, keepdim=True, unbiased=False)
    return (x - m) / torch.sqrt(v + eps)
def _scatter_add(tgt, idx, src, axis=0):
    return tgt.clone().index_add_(axis, idx, src)
def _segment_sum(src, seg, n):
    out = torch.zeros((n,) + src.shape[1:], dtype=src.dtype)
    return out.index_add_(0, seg, src)
def _pad(x, pw):
    flat = tuple(v for pair in reversed(pw) for v in pair)
    return torch.nn.functional.pad(x, flat)

kernel_name = 'concat_heads__gqa_block_cached__mha_block_cached__near_ridge'

def setup_inputs():

    _w = (lambda a: (lambda t: t.to(torch.bfloat16) if t.is_floating_point() else t)(torch.as_tensor(a)))
    def _A_setup():
        B, Sq, D = 8, 128, 640
        Hq, Hkv, Sk, Dh = 32, 32, 512, 128
        assert Hq % Hkv == 0, (Hq, Hkv)
        return {
            "x": _w((lambda *s: torch.randn(*s, dtype=torch.bfloat16) * 0.8)(B, Sq, D)),
            "k_cache": _w((lambda *s: torch.randn(*s, dtype=torch.bfloat16) * 0.8)(B, Hkv, Sk, Dh)),
            "v_cache": _w((lambda *s: torch.randn(*s, dtype=torch.bfloat16) * 0.05)(B, Hkv, Sk, Dh)),
            "wq": _w((lambda *s: torch.randn(*s, dtype=torch.bfloat16) * 0.8)(D, Hq * Dh) * (D ** -0.5)),
            "wo": _w((lambda *s: torch.randn(*s, dtype=torch.bfloat16) * 0.05)(Hq * Dh, D) * ((Hq * Dh) ** -0.5)),
        }
    _A_in = _A_setup()

    def _B_setup():
        B, Sq, D = 8, 128, 640
        H, Sk, Dh = 32, 512, 128
        return {
            "x": _w((lambda *s: torch.randn(*s, dtype=torch.bfloat16) * 0.8)(B, Sq, D)),
            "k_cache": _w((lambda *s: torch.randn(*s, dtype=torch.bfloat16) * 0.8)(B, H, Sk, Dh)),
            "v_cache": _w((lambda *s: torch.randn(*s, dtype=torch.bfloat16) * 0.05)(B, H, Sk, Dh)),
            "wq": _w((lambda *s: torch.randn(*s, dtype=torch.bfloat16) * 0.8)(D, H * Dh) * (D ** -0.5)),
            "wo": _w((lambda *s: torch.randn(*s, dtype=torch.bfloat16) * 0.05)(H * Dh, D) * ((H * Dh) ** -0.5)),
        }
    _B_in = _B_setup()

    return {
        "A_x": _A_in["x"],
        "A_k_cache": _A_in["k_cache"],
        "A_v_cache": _A_in["v_cache"],
        "A_wq": _A_in["wq"],
        "A_wo": _A_in["wo"],
        "B_x": _B_in["x"],
        "B_k_cache": _B_in["k_cache"],
        "B_v_cache": _B_in["v_cache"],
        "B_wq": _B_in["wq"],
        "B_wo": _B_in["wo"],
    }

def reference(A_x, A_k_cache, A_v_cache, A_wq, A_wo, B_x, B_k_cache, B_v_cache, B_wq, B_wo):
    def _A_ref(x, k_cache, v_cache, wq, wo):
        B, Sq, D = x.shape
        Hq, Dh = 32, 128
        Hkv = k_cache.shape[1]
        rep = Hq // Hkv
        q = (lambda x, *d: x.permute(*d))((x @ wq).reshape(B, Sq, Hq, Dh), 0, 2, 1, 3)
        k = (lambda x, n, axis: torch.repeat_interleave(x, n, dim=axis))(k_cache, rep, axis=1)
        v = (lambda x, n, axis: torch.repeat_interleave(x, n, dim=axis))(v_cache, rep, axis=1)
        scores = torch.einsum("bhqd,bhkd->bhqk", q, k) * (Dh ** -0.5)
        p = _softmax(scores, axis=-1)
        o = torch.einsum("bhqk,bhkd->bhqd", p, v)
        return (lambda x, *d: x.permute(*d))(o, 0, 2, 1, 3).reshape(B, Sq, Hq * Dh) @ wo

    def _B_ref(x, k_cache, v_cache, wq, wo):
        B, Sq, D = x.shape
        H, Dh = 32, 128
        q = (lambda x, *d: x.permute(*d))((x @ wq).reshape(B, Sq, H, Dh), 0, 2, 1, 3)
        scores = torch.einsum("bhqd,bhkd->bhqk", q, k_cache) * (Dh ** -0.5)
        p = _softmax(scores, axis=-1)
        o = torch.einsum("bhqk,bhkd->bhqd", p, v_cache)
        return (lambda x, *d: x.permute(*d))(o, 0, 2, 1, 3).reshape(B, Sq, H * Dh) @ wo

    a = _A_ref(A_x, A_k_cache, A_v_cache, A_wq, A_wo)
    b = _B_ref(B_x, B_k_cache, B_v_cache, B_wq, B_wo)
    return torch.concatenate([a, b], axis=-1)
```

```python
import re

_REG = re.compile(r'^(-?)(?:abs\()?([vsa])(?:(\d+)|\[(\d+):(\d+)\])\)?$')

TRANS = ('v_exp_f32', 'v_log_f32', 'v_rcp_f32', 'v_rsq_f32', 'v_sqrt_f32', 'v_sin_f32', 'v_cos_f32')


def regs_of(op):
    op = op.strip()
    if op in ('vcc', 'exec', 'm0', 'scc', 'vcc_lo', 'vcc_hi'):
        return ('s', [op.split('_')[0]])
    m = _REG.match(op)
    if not m:
        return None
    k = m.group(2)
    if m.group(3) is not None:
        return (k, [int(m.group(3))])
    return (k, list(range(int(m.group(4)), int(m.group(5)) + 1)))


def vr(lo, n=1):
    return f'v{lo}' if n == 1 else f'v[{lo}:{lo + n - 1}]'


def sr(lo, n=1):
    return f's{lo}' if n == 1 else f's[{lo}:{lo + n - 1}]'


class Ins:
    __slots__ = ('text', 'kind', 'vw', 'vr', 'sw', 'sr', 'a', 'b', 'c', 'passes', 'wide', 'nops', 'op')

    def __init__(self, text, kind):
        self.text = text
        self.kind = kind
        self.vw = set(); self.vr = set(); self.sw = set(); self.sr = set()
        self.a = set(); self.b = set(); self.c = set()
        self.passes = 0
        self.wide = False
        self.nops = 0
        self.op = text.split()[0] if text.split() else ''


MFMA_PASSES = {'v_mfma_f32_32x32x16_bf16': 8, 'v_mfma_f32_16x16x32_bf16': 4}
T_D_TO_V = {2: 5, 4: 8, 8: 12, 16: 20}
T_D_TO_C_OVL = {2: 4, 4: 6, 8: 10, 16: 18}
T_C_WAR = {2: 1, 4: 3, 8: 7, 16: 15}


class Asm:
    def __init__(self):
        self.ins = []

    def raw(self, text, kind='other'):
        i = Ins(text, kind)
        self.ins.append(i)
        return i

    def label(self, name):
        return self.raw(f'{name}:', 'label')

    def comment(self, t):
        return self.raw(f'; {t}', 'comment')

    def _add(self, i, op, write):
        r = regs_of(op)
        if r is None:
            return
        k, idx = r
        if k == 'v':
            (i.vw if write else i.vr).update(idx)
        elif k == 's':
            (i.sw if write else i.sr).update(idx)
        else:
            raise ValueError('agpr unsupported ' + op)

    def v(self, op, *ops, mods=''):
        text = f'{op} ' + ', '.join(str(o) for o in ops) + (' ' + mods if mods else '')
        base = op.replace('_e32', '').replace('_e64', '')
        kind = 'trans' if base in TRANS else 'valu'
        i = Ins(text, kind)
        ops = [str(o) for o in ops]
        if base.startswith('v_permlane'):
            for o in ops:
                self._add(i, o, True); self._add(i, o, False)
            i.kind = 'permlane'
        elif base.startswith('v_cmp'):
            self._add(i, ops[0], True)
            for o in ops[1:]:
                self._add(i, o, False)
        elif base.startswith('v_readfirstlane') or base.startswith('v_readlane'):
            self._add(i, ops[0], True)
            for o in ops[1:]:
                self._add(i, o, False)
            i.kind = 'readlane'
        elif base in ('v_add_co_u32', 'v_sub_co_u32'):
            self._add(i, ops[0], True); self._add(i, ops[1], True)
            for o in ops[2:]:
                self._add(i, o, False)
        elif base in ('v_addc_co_u32',):
            self._add(i, ops[0], True); self._add(i, ops[1], True)
            for o in ops[2:]:
                self._add(i, o, False)
        else:
            self._add(i, ops[0], True)
            for o in ops[1:]:
                self._add(i, o, False)
            if base.startswith('v_fmac') or base.startswith('v_pk_fmac'):
                self._add(i, ops[0], False)
            if base == 'v_cndmask_b32' and len(ops) == 3:
                i.sr.add('vcc')
        self.ins.append(i)
        return i

    def mfma(self, op, d, a, b, c):
        i = Ins(f'{op} {d}, {a}, {b}, {c}', 'mfma')
        i.passes = MFMA_PASSES[op]
        i.vw.update(regs_of(d)[1])
        i.a.update(regs_of(a)[1]); i.b.update(regs_of(b)[1])
        rc = regs_of(str(c))
        if rc:
            i.c.update(rc[1])
        i.vr = i.a | i.b | i.c
        self.ins.append(i)
        return i

    def s(self, op, *ops):
        text = f'{op} ' + ', '.join(str(o) for o in ops)
        i = Ins(text, 'salu')
        ops = [str(o) for o in ops]
        if op.startswith('s_cmp'):
            for o in ops:
                self._add(i, o, False)
            i.sw.add('scc')
        elif op.startswith('s_load'):
            i.kind = 'smem'
            self._add(i, ops[0], True)
            for o in ops[1:]:
                self._add(i, o, False)
        else:
            self._add(i, ops[0], True)
            for o in ops[1:]:
                self._add(i, o, False)
        self.ins.append(i)
        return i

    def branch(self, op, target):
        return self.raw(f'{op} {target}', 'branch')

    def waitcnt(self, vm=None, lgkm=None):
        parts = []
        if vm is not None:
            parts.append(f'vmcnt({vm})')
        if lgkm is not None:
            parts.append(f'lgkmcnt({lgkm})')
        return self.raw('s_waitcnt ' + ' '.join(parts), 'wait')

    def barrier(self):
        return self.raw('s_barrier', 'barrier')

    def nop(self, n):
        i = self.raw(f's_nop {n}', 'nop')
        i.nops = n + 1
        return i

    def bload(self, op, dst, voff, srd, soff, offset=0, mods=''):
        t = f'{op} {dst}, {voff}, {srd}, {soff} offen'
        if offset:
            t += f' offset:{offset}'
        if mods:
            t += ' ' + mods
        i = Ins(t, 'vmem_ld')
        self._add(i, dst, True); self._add(i, voff, False); self._add(i, srd, False); self._add(i, str(soff), False)
        self.ins.append(i)
        return i

    def bstore(self, op, src, voff, srd, soff, offset=0, mods=''):
        t = f'{op} {src}, {voff}, {srd}, {soff} offen'
        if offset:
            t += f' offset:{offset}'
        if mods:
            t += ' ' + mods
        i = Ins(t, 'vmem_st')
        self._add(i, src, False); self._add(i, voff, False); self._add(i, srd, False); self._add(i, str(soff), False)
        i.wide = op.endswith('x4') or op.endswith('x3')
        i.a = set(regs_of(src)[1])
        self.ins.append(i)
        return i

    def dma(self, voff, srd, soff, offset=0, mods=''):
        t = f'buffer_load_dwordx4 {voff}, {srd}, {soff} offen'
        if offset:
            t += f' offset:{offset}'
        if mods:
            t += ' ' + mods
        t += ' lds'
        i = Ins(t, 'dma')
        self._add(i, voff, False); self._add(i, srd, False); self._add(i, str(soff), False)
        i.sr.add('m0')
        self.ins.append(i)
        return i

    def dsr(self, op, dst, addr, offset=0):
        t = f'{op} {dst}, {addr}' + (f' offset:{offset}' if offset else '')
        assert 0 <= offset < 65536, offset
        i = Ins(t, 'ds_rd')
        self._add(i, dst, True); self._add(i, addr, False)
        self.ins.append(i)
        return i

    def dsw(self, op, addr, src, offset=0):
        t = f'{op} {addr}, {src}' + (f' offset:{offset}' if offset else '')
        assert 0 <= offset < 65536, offset
        i = Ins(t, 'ds_wr')
        self._add(i, src, False); self._add(i, addr, False)
        self.ins.append(i)
        return i

    @staticmethod
    def _need(p, c):
        n = 0
        pv = p.kind in ('valu', 'trans', 'permlane', 'readlane')
        cv = c.kind in ('valu', 'trans', 'permlane', 'readlane')
        cmem = c.kind in ('vmem_ld', 'vmem_st', 'dma', 'ds_rd', 'ds_wr')
        if pv:
            if c.kind == 'mfma' and (p.vw & c.vr):
                n = max(n, 2)
            if p.kind == 'trans' and cv and c.kind != 'trans' and (p.vw & (c.vr | c.vw)):
                n = max(n, 1)
            if p.kind == 'trans' and c.kind == 'trans' and (p.vw & c.vr):
                n = max(n, 1)
            if c.kind == 'permlane' and (p.vw & c.vr):
                n = max(n, 2)
            if c.kind == 'readlane' and (p.vw & c.vr):
                n = max(n, 1)
            if p.sw:
                if cv and (p.sw & c.sr):
                    n = max(n, 4 if c.kind == 'readlane' else 2)
                if cmem and (p.sw & c.sr):
                    n = max(n, 5)
                if c.kind in ('salu', 'smem', 'branch') and (p.sw & c.sr):
                    n = max(n, 2)
        if p.kind == 'mfma':
            if cv and (p.vw & (c.vr | c.vw)):
                n = max(n, T_D_TO_V[p.passes])
            if cmem and (p.vw & (c.vr | c.vw)):
                n = max(n, T_D_TO_V[p.passes])
            if c.kind == 'mfma':
                if p.vw & (c.a | c.b):
                    n = max(n, T_D_TO_V[p.passes])
                if p.vw & c.c:
                    if not (p.vw == c.c and p.passes == c.passes and p.passes >= 4):
                        n = max(n, T_D_TO_C_OVL[p.passes])
            if cv and (p.c & c.vw):
                n = max(n, T_C_WAR[p.passes])
        if p.kind == 'salu' and 'm0' in p.sw and c.kind == 'dma':
            n = max(n, 1)
        if p.kind == 'vmem_st' and p.wide:
            if p.a & c.vw:
                n = max(n, 2 if cv else 1)
        return n

    def fix_hazards(self):
        out = []
        WIN = 24
        for c in self.ins:
            if c.kind in ('label', 'comment'):
                out.append(c)
                continue
            dist = 0
            need = 0
            for p in reversed(out):
                if p.kind in ('comment', 'label'):
                    continue
                r = self._need(p, c)
                if r > dist:
                    need = max(need, r - dist)
                dist += p.nops if p.kind == 'nop' else 1
                if dist >= WIN:
                    break
            while need > 0:
                k = min(need, 16)
                i = Ins(f's_nop {k - 1}', 'nop')
                i.nops = k
                out.append(i)
                need -= k
            out.append(c)
        self.ins = out

    def check_backedge(self, label, branch_idx_text):
        li = [k for k, i in enumerate(self.ins) if i.kind == 'label' and i.text == label + ':'][0]
        bi = [k for k, i in enumerate(self.ins) if i.kind == 'branch' and i.text == branch_idx_text][0]
        tail = [i for i in self.ins[max(li, bi - 40):bi + 1] if i.kind not in ('label', 'comment')]
        head = [i for i in self.ins[li + 1:li + 40] if i.kind not in ('label', 'comment')]
        seq = tail + head
        for ci in range(len(tail), len(seq)):
            dist = 0
            for pi in range(ci - 1, -1, -1):
                r = self._need(seq[pi], seq[ci])
                assert r <= dist, f'back-edge hazard {seq[pi].text} -> {seq[ci].text} need {r} have {dist}'
                dist += seq[pi].nops if seq[pi].kind == 'nop' else 1
                if dist > 24:
                    break

    def text(self):
        lines = []
        for i in self.ins:
            if i.kind == 'label':
                lines.append(i.text)
            else:
                lines.append('    ' + i.text)
        return '\n'.join(lines) + '\n'


class Q:
    def __init__(self, a, which, maxn):
        self.a = a
        self.which = which
        self.q = []
        self.maxn = maxn

    def issue(self, tag):
        self.q.append(tag)

    def wait_for(self, tag):
        idx = [k for k, t in enumerate(self.q) if t == tag]
        if not idx:
            return
        n = len(self.q) - 1 - idx[-1]
        n = min(n, self.maxn)
        if self.which == 'vm':
            self.a.waitcnt(vm=n)
        else:
            self.a.waitcnt(lgkm=n)
        self.q = self.q[len(self.q) - n:] if n else []

    def wait_all(self):
        if self.which == 'vm':
            self.a.waitcnt(vm=0)
        else:
            self.a.waitcnt(lgkm=0)
        self.q = []

    def copy(self, a=None):
        c = Q(a or self.a, self.which, self.maxn)
        c.q = list(self.q)
        return c
```

```python
import sys, struct, math
from asmlib import Asm, Q, vr, sr

NAME = 'concat_heads__gqa_block_cached__mha_block_cached__near_ridge'
MF32 = 'v_mfma_f32_32x32x16_bf16'
MF16 = 'v_mfma_f32_16x16x32_bf16'

OFRAG_OFF = 0
WFRAG_OFF = 16 << 20
WS_BYTES = 26 << 20

CSCALE = (128 ** -0.5) * math.log2(math.e)


def f32bits(x):
    return struct.unpack('<I', struct.pack('<f', x))[0]


def srd(a, base_sr, ptr_sr, off_s, nbytes):
    if off_s is None:
        a.s('s_mov_b32', sr(base_sr), sr(ptr_sr))
        a.s('s_mov_b32', sr(base_sr + 1), sr(ptr_sr + 1))
    else:
        a.s('s_add_u32', sr(base_sr), sr(ptr_sr), off_s)
        a.s('s_addc_u32', sr(base_sr + 1), sr(ptr_sr + 1), 0)
    a.s('s_mov_b32', sr(base_sr + 2), nbytes)
    a.s('s_mov_b32', sr(base_sr + 3), '0x00020000')


def mfma_stream(a, lq, items, frags, fillers=None, fill_per=0):
    D = len(frags)
    n = len(items)
    fillers = list(fillers or [])

    def issue(k):
        fb = frags[k % D]
        for (op, ro, nr, addr, off) in items[k][0]:
            a.dsr(op, vr(fb + ro, nr), addr, off)
            lq.issue(('f', k))

    pre = min(D - 1, n)
    for k in range(pre):
        issue(k)
    for k in range(n):
        if k + pre < n:
            issue(k + pre)
        lq.wait_for(('f', k))
        items[k][1](frags[k % D])
        for _ in range(fill_per):
            if fillers:
                fillers.pop(0)()
    for f in fillers:
        f()


def gen_attn(a):
    K = 'attn_kernel'
    a.raw('.globl ' + K); a.raw('.p2align 8'); a.raw(f'.type {K},@function')
    a.label(K)
    S_W, S_HF, S_WQ, S_BLK, S_H, S_B, S_T0, S_T1 = 3, 4, 5, 6, 7, 8, 9, 10
    SX, SWQ, SK, SV, SKO, SVO, SWO, SWS = 12, 16, 20, 24, 28, 32, 36, 40
    P0 = 44
    S_HB, S_RD, S_WR, S_KOFF, S_VOFF, S_CNT, S_C, S_M0B, S_T2, S_T3 = 70, 71, 72, 73, 74, 75, 76, 77, 78, 79
    S_5120 = 80
    V_T, V_L, V_DV, V_DW = 0, 1, 2, 3
    V_DK = 4
    V_WA = 8
    V_FR = 16
    V_QA = 32
    V_XF = 96
    V_SA = 96
    V_PF = 160
    V_KB = 192
    V_VB = 200
    V_M, V_LS, V_MC, V_AL, V_T0, V_T1, V_T2, V_T3 = range(204, 212)
    V_FR2 = 212
    V_QF = 224
    V_G = 96
    V_GP = 136

    a.s('s_cmp_ge_u32', 's2', 256)
    a.branch('s_cbranch_scc1', 'L_attn_end')
    a.s('s_load_dwordx16', sr(P0, 16), 's[0:1]', 0)
    a.s('s_load_dwordx4', sr(60, 4), 's[0:1]', 64)
    a.s('s_load_dwordx2', sr(68, 2), 's[0:1]', 96)
    a.v('v_lshrrev_b32', vr(2), 6, 'v0')
    a.v('v_and_b32', vr(V_L), 63, 'v0')
    a.v('v_readfirstlane_b32', sr(S_W), vr(2))
    a.s('s_lshr_b32', sr(S_HF), sr(S_W), 2)
    a.s('s_and_b32', sr(S_WQ), sr(S_W), 3)
    a.s('s_and_b32', sr(S_T0), 's2', 7)
    a.s('s_lshr_b32', sr(S_BLK), sr(S_T0), 2)
    a.s('s_and_b32', sr(S_T0), sr(S_T0), 3)
    a.s('s_lshl_b32', sr(S_T0), sr(S_T0), 3)
    a.s('s_lshr_b32', sr(S_T1), 's2', 3)
    a.s('s_and_b32', sr(S_H), sr(S_T1), 7)
    a.s('s_add_u32', sr(S_H), sr(S_H), sr(S_T0))
    a.s('s_lshr_b32', sr(S_B), sr(S_T1), 3)
    a.s('s_lshl_b32', sr(S_B), sr(S_B), 1)
    a.s('s_add_u32', sr(S_B), sr(S_B), sr(S_HF))
    a.s('s_mul_i32', sr(S_HB), sr(S_HF), 81920)
    a.s('s_lshl_b32', sr(S_T0), sr(S_WQ), 12)
    a.s('s_add_u32', sr(S_M0B), sr(S_HB), sr(S_T0))
    a.s('s_mov_b32', sr(S_C), hex(f32bits(CSCALE)))
    a.s('s_mov_b32', sr(S_5120), 5120)

    a.v('v_and_b32', vr(16), 31, vr(V_L))
    a.s('s_lshl_b32', sr(S_T0), sr(S_WQ), 5)
    a.v('v_add_u32', vr(16), sr(S_T0), vr(16))
    a.v('v_mul_u32_u24', vr(16), 1280, vr(16))
    a.v('v_lshrrev_b32', vr(17), 5, vr(V_L))
    a.v('v_lshl_add_u32', vr(V_T), vr(17), 4, vr(16))
    a.v('v_lshrrev_b32', vr(16), 4, vr(V_L))
    a.v('v_and_b32', vr(17), 15, vr(V_L))
    a.v('v_lshlrev_b32', vr(18), 2, vr(16))
    a.v('v_xor_b32', vr(18), vr(18), vr(17))
    a.v('v_lshlrev_b32', vr(18), 4, vr(18))
    a.v('v_lshl_add_u32', vr(V_DV), vr(16), 8, vr(18))
    a.v('v_lshl_add_u32', vr(V_DW), vr(16), 13, vr(18))
    for i in range(4):
        a.v('v_add_u32', vr(18), 4 * i, vr(16))
        a.v('v_xor_b32', vr(18), vr(18), vr(17))
        a.v('v_lshlrev_b32', vr(18), 4, vr(18))
        a.v('v_lshl_add_u32', vr(V_DK + i), vr(16), 8, vr(18))

    def tr_base(dst):
        a.v('v_lshrrev_b32', vr(16), 5, vr(V_L))
        a.v('v_bfe_u32', vr(17), vr(V_L), 2, 2)
        a.v('v_bfe_u32', vr(18), vr(V_L), 4, 1)
        a.v('v_and_b32', vr(19), 1, vr(V_L))
        a.v('v_bfe_u32', vr(20), vr(V_L), 1, 1)
        a.v('v_lshl_add_u32', vr(21), vr(16), 3, vr(17))
        a.v('v_lshlrev_b32', vr(21), 8, vr(21))
        a.v('v_lshlrev_b32', vr(17), 2, vr(17))
        a.v('v_lshl_add_u32', vr(17), vr(18), 1, vr(17))
        a.v('v_add_u32', vr(17), vr(17), vr(19))
        a.v('v_lshl_add_u32', vr(21), vr(17), 4, vr(21))
        a.v('v_lshl_add_u32', vr(dst), vr(20), 3, vr(21))

    tr_base(22)
    for t in range(4):
        a.v('v_xor_b32', vr(V_WA + t), t << 6, vr(22))
        a.v('v_add_u32', vr(V_WA + 4 + t), 81920, vr(V_WA + t))

    a.waitcnt(lgkm=0)
    a.s('s_cmp_eq_u32', sr(S_BLK), 0)
    a.s('s_cselect_b64', sr(44, 2), sr(44, 2), sr(54, 2))
    a.s('s_cselect_b64', sr(46, 2), sr(46, 2), sr(56, 2))
    a.s('s_cselect_b64', sr(48, 2), sr(48, 2), sr(58, 2))
    a.s('s_cselect_b64', sr(50, 2), sr(50, 2), sr(60, 2))
    a.s('s_cselect_b64', sr(52, 2), sr(52, 2), sr(62, 2))
    a.s('s_mul_i32', sr(S_T0), sr(S_B), 163840)
    srd(a, SX, 44, sr(S_T0), 163840)
    a.s('s_lshl_b32', sr(S_T0), sr(S_H), 8)
    srd(a, SWQ, 50, sr(S_T0), 5242880 - 8192 + 256)
    a.s('s_lshl_b32', sr(S_T0), sr(S_B), 5)
    a.s('s_add_u32', sr(S_T0), sr(S_T0), sr(S_H))
    a.s('s_lshl_b32', sr(S_T0), sr(S_T0), 17)
    srd(a, SK, 46, sr(S_T0), 131072)
    srd(a, SV, 48, sr(S_T0), 131072)
    a.s('s_xor_b32', sr(S_T0), sr(S_T0), 32 << 17)
    srd(a, SKO, 46, sr(S_T0), 131072)
    srd(a, SVO, 48, sr(S_T0), 131072)
    srd(a, SWO, 52, None, 5242880)
    srd(a, SWS, 68, None, WS_BYTES)

    a.s('s_lshl_b32', sr(S_T0), sr(S_WQ), 12)
    a.s('s_add_u32', sr(S_KOFF), sr(S_T0), 32768)
    a.s('s_add_u32', sr(S_VOFF), sr(S_T0), 32768)
    a.s('s_mov_b32', sr(S_RD), 32768)
    a.s('s_mov_b32', sr(S_WR), 16384)

    WSLOT = [0, 16384, 81920, 98304]

    def xload(vq, s):
        a.bload('buffer_load_dwordx4', vr(V_XF + 4 * s, 4), vr(V_T), sr(SX, 4), 0, offset=32 * s)
        vq.issue(('x', s))

    def wdma(vq, c):
        a.s('s_lshl_b32', sr(S_T0), sr(S_WQ), 12)
        a.s('s_add_u32', sr(S_T0), sr(S_T0), WSLOT[c % 4])
        a.s('s_mov_b32', 'm0', sr(S_T0))
        a.s('s_lshl_b32', sr(S_T1), sr(S_WQ), 17)
        for i in range(4):
            a.s('s_add_u32', sr(S_T2), sr(S_T1), (64 * c + 4 * i) * 8192 - i * 1024)
            a.dma(vr(V_DW), sr(SWQ, 4), sr(S_T2), offset=i * 1024)
            vq.issue(('W', c))

    def kvdma(vq, isk, srd_, soff, m0expr_s, tag):
        a.s('s_mov_b32', 'm0', m0expr_s)
        for i in range(4):
            a.dma(vr(V_DK + i) if isk else vr(V_DV), sr(srd_, 4), soff, offset=i * 1024)
            vq.issue(tag)

    def gather(vq):
        a.v('v_lshrrev_b32', vr(V_T), 4, vr(V_L))
        a.v('v_mul_u32_u24', vr(V_T), 10240, vr(V_T))
        a.v('v_and_b32', vr(V_GP), 15, vr(V_L))
        a.v('v_lshl_add_u32', vr(V_T), vr(V_GP), 1, vr(V_T))
        a.s('s_lshl_b32', sr(S_T0), sr(S_H), 2)
        a.s('s_add_u32', sr(S_T0), sr(S_T0), sr(S_WQ))
        a.s('s_mul_i32', sr(S_T0), sr(S_T0), 40960)
        a.s('s_mul_i32', sr(S_T1), sr(S_B), 160)
        a.s('s_add_u32', sr(S_T0), sr(S_T0), sr(S_T1))
        a.s('s_add_u32', sr(S_T1), sr(S_T0), 5120)
        for i in range(5):
            for j in range(8):
                a.bload('buffer_load_ushort', vr(V_G + 8 * i + j), vr(V_T), sr(SWO, 4),
                        sr(S_T0) if j < 4 else sr(S_T1), offset=(j & 3) * 1280 + i * 32)
                vq.issue(('g', 0))

    def qproj(role):
        vq = Q(a, 'vm', 63)
        lq = Q(a, 'lgkm', 15)
        if role == 'L':
            for c in range(4):
                wdma(vq, c)
                for s in range(4 * c, 4 * c + 4 if c < 3 else 40):
                    xload(vq, s)
        else:
            for s in range(40):
                xload(vq, s)
            a.s('s_lshl_b32', sr(S_T0), sr(S_WQ), 12)
            for ci in range(3):
                for own in (0, 1):
                    isk = ci < 2
                    a.s('s_add_u32', sr(S_T1), sr(S_T0), (81920 if own else 0) + (ci + 2) * 16384)
                    a.s('s_add_u32', sr(S_T2), sr(S_T0), (ci & 1) * 16384 if isk else 0)
                    srd_ = (SK if own else SKO) if isk else (SV if own else SVO)
                    kvdma(vq, isk, srd_, sr(S_T2), sr(S_T1), ('kv', 0))
        for c in range(10):
            vq.wait_for(('W', c))
            vq.wait_for(('x', 4 * c + 3))
            a.barrier()
            if role == 'L' and c >= 1 and c + 3 <= 9:
                wdma(vq, c + 3)
            if c == 8:
                gather(vq)
            if c == 9:
                a.s('s_lshl_b32', sr(S_T0), sr(S_WQ), 12)
                a.s('s_add_u32', sr(S_T2), sr(S_T0), 16384)
                kvdma(vq, False, SV, sr(S_T2), sr(S_M0B), ('c3', 0))
            items = []
            for u in range(4):
                for t in range(4):
                    ws_ = WSLOT[c % 4]
                    ab = V_WA + t if ws_ < 65536 else V_WA + 4 + t
                    base = ws_ if ws_ < 65536 else ws_ - 81920
                    reads = [('ds_read_b64_tr_b16', 2 * e, 2, vr(ab), base + u * 4096 + e * 1024) for e in range(2)]
                    s = 4 * c + u

                    def mf(fb, t=t, s=s):
                        a.mfma(MF32, vr(V_QA + 16 * t, 16), vr(fb, 4), vr(V_XF + 4 * s, 4),
                               0 if s == 0 else vr(V_QA + 16 * t, 16))
                    items.append((reads, mf))
            mfma_stream(a, lq, items, [V_FR + 4 * k for k in range(4)])
        for t in range(4):
            for hh in range(2):
                for k in range(4):
                    a.v('v_cvt_pk_bf16_f32', vr(V_QF + 4 * (2 * t + hh) + k),
                        vr(V_QA + 16 * t + 8 * hh + 2 * k), vr(V_QA + 16 * t + 8 * hh + 2 * k + 1))
        vq.wait_for(('g', 0))
        for i in range(5):
            for k in range(4):
                a.v('v_lshl_or_b32', vr(V_GP + 4 * i + k), vr(V_G + 8 * i + 2 * k + 1), 16, vr(V_G + 8 * i + 2 * k))
        a.v('v_lshlrev_b32', vr(V_T), 4, vr(V_L))
        a.s('s_mul_i32', sr(S_T0), sr(S_BLK), 40)
        a.s('s_mul_i32', sr(S_T1), sr(S_B), 5)
        a.s('s_add_u32', sr(S_T0), sr(S_T0), sr(S_T1))
        a.s('s_lshl_b32', sr(S_T0), sr(S_T0), 7)
        a.s('s_lshl_b32', sr(S_T1), sr(S_H), 2)
        a.s('s_add_u32', sr(S_T0), sr(S_T0), sr(S_T1))
        a.s('s_add_u32', sr(S_T0), sr(S_T0), sr(S_WQ))
        a.s('s_lshl_b32', sr(S_T0), sr(S_T0), 10)
        a.s('s_add_u32', sr(S_T0), sr(S_T0), WFRAG_OFF)
        for i in range(5):
            if i:
                a.s('s_add_u32', sr(S_T0), sr(S_T0), 131072)
            a.bstore('buffer_store_dwordx4', vr(V_GP + 4 * i, 4), vr(V_T), sr(SWS, 4), sr(S_T0))
            vq.issue(('st', 0))
        return vq

    a.s('s_cmp_ge_u32', sr(S_W), 4)
    a.branch('s_cbranch_scc1', 'L_roleP')
    q1 = qproj('L')
    a.branch('s_branch', 'L_join')
    a.label('L_roleP')
    q2 = qproj('P')
    a.label('L_join')
    assert q1.q == q2.q, (q1.q, q2.q)
    a.nop(7)

    a.v('v_and_b32', vr(16), 0x13, vr(V_L))
    a.v('v_bfe_u32', vr(17), vr(V_L), 2, 1)
    a.v('v_lshl_add_u32', vr(16), vr(17), 3, vr(16))
    a.v('v_bfe_u32', vr(17), vr(V_L), 3, 1)
    a.v('v_lshl_add_u32', vr(16), vr(17), 2, vr(16))
    a.v('v_lshrrev_b32', vr(17), 5, vr(V_L))
    a.v('v_and_b32', vr(18), 15, vr(16))
    a.v('v_xor_b32', vr(17), vr(17), vr(18))
    a.v('v_lshlrev_b32', vr(17), 4, vr(17))
    a.v('v_lshl_add_u32', vr(16), vr(16), 8, vr(17))
    for d in range(8):
        a.v('v_xor_b32', vr(17), d << 5, vr(16))
        a.v('v_add_u32', vr(V_KB + d), sr(S_HB), vr(17))
    for t in range(4):
        a.v('v_add_u32', vr(V_VB + t), sr(S_HB), vr(V_WA + t))
    for r in range(64):
        a.v('v_mov_b32', vr(V_QA + r), 0)
    a.v('v_mov_b32', vr(V_M), '0xff800000')
    a.v('v_mov_b32', vr(V_LS), 0)
    a.s('s_mov_b32', sr(S_CNT), 0)

    frags = [V_FR + 4 * k for k in range(4)] + [V_FR2 + 4 * k for k in range(3)]
    V_CUR = V_WA
    lq = Q(a, 'lgkm', 15)

    a.label('L_loop')
    for st in range(4):
        isk = st < 2
        a.waitcnt(vm=12)
        a.barrier()
        a.s('s_add_u32', sr(S_T0), sr(S_M0B), sr(S_WR))
        dummy = Q(a, 'vm', 63)
        kvdma(dummy, isk, SK if isk else SV, sr(S_KOFF if isk else S_VOFF), sr(S_T0), None)
        a.s('s_add_u32', sr(S_KOFF if isk else S_VOFF), sr(S_KOFF if isk else S_VOFF), 16384)
        a.s('s_add_u32', sr(S_WR), sr(S_WR), 16384)
        a.s('s_cmp_eq_u32', sr(S_WR), 81920)
        a.s('s_cselect_b32', sr(S_WR), 0, sr(S_WR))
        if isk:
            for d in range(8):
                a.v('v_add_u32', vr(V_CUR + d), sr(S_RD), vr(V_KB + d))
        else:
            for t in range(4):
                a.v('v_add_u32', vr(V_CUR + t), sr(S_RD), vr(V_VB + t))
        a.s('s_add_u32', sr(S_RD), sr(S_RD), 16384)
        a.s('s_cmp_eq_u32', sr(S_RD), 81920)
        a.s('s_cselect_b32', sr(S_RD), 0, sr(S_RD))
        items = []
        if isk:
            for kt in range(2):
                for d in range(8):
                    reads = [('ds_read_b128', 0, 4, vr(V_CUR + d), kt * 8192)]
                    acc = V_SA + 16 * (2 * st + kt)

                    def mf(fb, acc=acc, d=d):
                        a.mfma(MF32, vr(acc, 16), vr(fb, 4), vr(V_QF + 4 * d, 4), 0 if d == 0 else vr(acc, 16))
                    items.append((reads, mf))
        else:
            for u in range(4):
                for t in range(4):
                    reads = [('ds_read_b64_tr_b16', 2 * e, 2, vr(V_CUR + t), u * 4096 + e * 1024) for e in range(2)]
                    pu = 4 * (st - 2) + u

                    def mf(fb, t=t, pu=pu):
                        a.mfma(MF32, vr(V_QA + 16 * t, 16), vr(fb, 4), vr(V_PF + 4 * pu, 4), vr(V_QA + 16 * t, 16))
                    items.append((reads, mf))
        mfma_stream(a, lq, items, frags)
        if st == 1:
            ch = [V_T0, V_T1, V_T2, V_T3]
            for c4 in range(4):
                b0 = V_SA + 16 * c4
                a.v('v_max3_f32', vr(ch[c4]), vr(b0), vr(b0 + 1), vr(b0 + 2))
            for k in range(3, 15, 2):
                for c4 in range(4):
                    b0 = V_SA + 16 * c4
                    a.v('v_max3_f32', vr(ch[c4]), vr(ch[c4]), vr(b0 + k), vr(b0 + k + 1))
            for c4 in range(4):
                b0 = V_SA + 16 * c4
                a.v('v_max_f32', vr(ch[c4]), vr(ch[c4]), vr(b0 + 15))
            a.v('v_max3_f32', vr(V_T0), vr(V_T0), vr(V_T1), vr(V_T2))
            a.v('v_max_f32', vr(V_T0), vr(V_T0), vr(V_T3))
            a.v('v_mov_b32', vr(V_T1), vr(V_T0))
            a.v('v_permlane32_swap_b32', vr(V_T0), vr(V_T1))
            a.v('v_max3_f32', vr(V_T0), vr(V_T0), vr(V_T1), vr(V_M))
            a.v('v_sub_f32', vr(V_T1), vr(V_M), vr(V_T0))
            a.v('v_mul_f32', vr(V_T1), sr(S_C), vr(V_T1))
            a.v('v_exp_f32', vr(V_AL), vr(V_T1))
            a.v('v_mul_f32', vr(V_MC), sr(S_C), vr(V_T0))
            a.v('v_mov_b32', vr(V_M), vr(V_T0))
            for r in range(64):
                a.v('v_fma_f32', vr(V_SA + r), vr(V_SA + r), sr(S_C), '-' + vr(V_MC))
            for r in range(64):
                a.v('v_exp_f32', vr(V_SA + r), vr(V_SA + r))
            a.v('v_mul_f32', vr(V_LS), vr(V_LS), vr(V_AL))
            for c4 in range(4):
                b0 = V_SA + 16 * c4
                a.v('v_add_f32', vr(ch[c4]), vr(b0), vr(b0 + 1))
            for k in range(2, 16):
                for c4 in range(4):
                    b0 = V_SA + 16 * c4
                    a.v('v_add_f32', vr(ch[c4]), vr(ch[c4]), vr(b0 + k))
            a.v('v_add_f32', vr(V_T0), vr(V_T0), vr(V_T1))
            a.v('v_add_f32', vr(V_T2), vr(V_T2), vr(V_T3))
            a.v('v_add_f32', vr(V_T0), vr(V_T0), vr(V_T2))
            a.v('v_add_f32', vr(V_LS), vr(V_LS), vr(V_T0))
            for k in range(32):
                a.v('v_cvt_pk_bf16_f32', vr(V_PF + k), vr(V_SA + 2 * k), vr(V_SA + 2 * k + 1))
            for r in range(64):
                a.v('v_mul_f32', vr(V_QA + r), vr(V_AL), vr(V_QA + r))
    a.s('s_add_u32', sr(S_CNT), sr(S_CNT), 1)
    a.s('s_cmp_lt_u32', sr(S_CNT), 4)
    a.branch('s_cbranch_scc1', 'L_loop')

    a.v('v_mov_b32', vr(V_T1), vr(V_LS))
    a.v('v_permlane32_swap_b32', vr(V_LS), vr(V_T1))
    a.v('v_add_f32', vr(V_LS), vr(V_LS), vr(V_T1))
    a.v('v_rcp_f32', vr(V_AL), vr(V_LS))
    a.v('v_bfe_u32', vr(V_T0), vr(V_L), 4, 1)
    a.v('v_lshlrev_b32', vr(V_T0), 17, vr(V_T0))
    a.v('v_lshrrev_b32', vr(V_T1), 5, vr(V_L))
    a.v('v_lshl_add_u32', vr(V_T0), vr(V_T1), 8, vr(V_T0))
    a.v('v_and_b32', vr(V_T1), 15, vr(V_L))
    a.v('v_lshl_add_u32', vr(V_T0), vr(V_T1), 4, vr(V_T0))
    a.s('s_lshl_b32', sr(S_T0), sr(S_BLK), 6)
    a.s('s_lshl_b32', sr(S_T1), sr(S_B), 3)
    a.s('s_add_u32', sr(S_T0), sr(S_T0), sr(S_T1))
    a.s('s_lshl_b32', sr(S_T1), sr(S_WQ), 1)
    a.s('s_add_u32', sr(S_T0), sr(S_T0), sr(S_T1))
    a.s('s_lshl_b32', sr(S_T0), sr(S_T0), 7)
    a.s('s_lshl_b32', sr(S_T1), sr(S_H), 2)
    a.s('s_add_u32', sr(S_T0), sr(S_T0), sr(S_T1))
    a.s('s_lshl_b32', sr(S_T0), sr(S_T0), 10)
    for t in range(4):
        for r in range(16):
            a.v('v_mul_f32', vr(V_QA + 16 * t + r), vr(V_AL), vr(V_QA + 16 * t + r))
        for k in range(8):
            a.v('v_cvt_pk_bf16_f32', vr(V_SA + 8 * t + k), vr(V_QA + 16 * t + 2 * k), vr(V_QA + 16 * t + 2 * k + 1))
        for hh in range(2):
            a.bstore('buffer_store_dwordx4', vr(V_SA + 8 * t + 4 * hh, 4), vr(V_T0), sr(SWS, 4), sr(S_T0),
                     offset=t * 1024 + hh * 512)
    a.waitcnt(vm=0)
    a.label('L_attn_end')
    a.raw('s_endpgm')


def gen_oproj(a):
    K = 'oproj_kernel'
    a.raw('.globl ' + K); a.raw('.p2align 8'); a.raw(f'.type {K},@function')
    a.label(K)
    S_W, S_BLK, S_QG, S_NG, S_T0, S_T1 = 3, 4, 5, 6, 7, 8
    SWS, SOUT = 12, 16
    SA = 24
    SB = 30
    V_L, V_OFF = 1, 2
    V_ACC = 8
    V_ST = 96
    a.s('s_cmp_ge_u32', 's2', 256)
    a.branch('s_cbranch_scc1', 'L_op_end')
    a.s('s_load_dwordx2', sr(20, 2), 's[0:1]', 96)
    a.s('s_load_dwordx2', sr(22, 2), 's[0:1]', 80)
    a.v('v_lshrrev_b32', vr(6), 6, 'v0')
    a.v('v_and_b32', vr(V_L), 63, 'v0')
    a.v('v_readfirstlane_b32', sr(S_W), vr(6))
    a.s('s_and_b32', sr(S_T0), 's2', 7)
    a.s('s_lshr_b32', sr(S_BLK), sr(S_T0), 2)
    a.s('s_and_b32', sr(S_T0), sr(S_T0), 3)
    a.s('s_lshl_b32', sr(S_T0), sr(S_T0), 2)
    a.s('s_lshr_b32', sr(S_T1), 's2', 3)
    a.s('s_and_b32', sr(S_NG), sr(S_T1), 7)
    a.s('s_lshr_b32', sr(S_QG), sr(S_T1), 3)
    a.s('s_add_u32', sr(S_QG), sr(S_QG), sr(S_T0))
    a.v('v_lshlrev_b32', vr(V_OFF), 4, vr(V_L))
    for k in range(1, 4):
        a.v('v_add_u32', vr(V_OFF + k), 4096 * k, vr(V_OFF))
    a.s('s_mul_i32', sr(S_T0), sr(S_BLK), 40)
    a.s('s_mul_i32', sr(S_T1), sr(S_NG), 5)
    a.s('s_add_u32', sr(S_T0), sr(S_T0), sr(S_T1))
    a.s('s_lshl_b32', sr(S_T0), sr(S_T0), 17)
    a.s('s_lshl_b32', sr(S_T1), sr(S_W), 14)
    a.s('s_add_u32', sr(S_T0), sr(S_T0), sr(S_T1))
    for i in range(5):
        a.s('s_add_u32', sr(SA + i), sr(S_T0), WFRAG_OFF + i * 131072)
    a.s('s_lshl_b32', sr(S_T0), sr(S_BLK), 6)
    a.s('s_lshl_b32', sr(9), sr(S_QG), 2)
    a.s('s_add_u32', sr(S_T0), sr(S_T0), sr(9))
    a.s('s_lshl_b32', sr(S_T0), sr(S_T0), 17)
    a.s('s_add_u32', sr(S_T0), sr(S_T0), sr(S_T1))
    for j in range(4):
        a.s('s_add_u32', sr(SB + j), sr(S_T0), OFRAG_OFF + j * 131072)
    a.waitcnt(lgkm=0)
    srd(a, SWS, 20, None, WS_BYTES)
    srd(a, SOUT, 22, None, 1024 * 2560)

    vq = Q(a, 'vm', 63)

    def issue(ks):
        st = V_ST + 36 * (ks % 4)
        for i in range(5):
            a.bload('buffer_load_dwordx4', vr(st + 4 * i, 4), vr(V_OFF + ks // 4), sr(SWS, 4), sr(SA + i),
                    offset=(ks % 4) * 1024)
            vq.issue(('k', ks))
        for j in range(4):
            a.bload('buffer_load_dwordx4', vr(st + 20 + 4 * j, 4), vr(V_OFF + ks // 4), sr(SWS, 4), sr(SB + j),
                    offset=(ks % 4) * 1024)
            vq.issue(('k', ks))

    for ks in range(4):
        issue(ks)
    for ks in range(16):
        vq.wait_for(('k', ks))
        st = V_ST + 36 * (ks % 4)
        for i in range(5):
            for j in range(4):
                acc = V_ACC + 4 * (4 * i + j)
                a.mfma(MF16, vr(acc, 4), vr(st + 4 * i, 4), vr(st + 20 + 4 * j, 4), 0 if ks == 0 else vr(acc, 4))
        if ks + 4 < 16:
            issue(ks + 4)
    V_A0 = V_ST
    a.s('s_lshl_b32', sr(S_T0), sr(S_W), 10)
    a.v('v_add_u32', vr(V_A0), sr(S_T0), vr(V_OFF))
    a.v('v_add_u32', vr(V_A0 + 1), 65536, vr(V_A0))
    a.v('v_add_u32', vr(V_A0 + 2), 131072, vr(V_A0))
    for tl in range(20):
        a.dsw('ds_write_b128', vr(V_A0 + tl // 8), vr(V_ACC + 4 * tl, 4), (tl % 8) * 8192)
    a.waitcnt(lgkm=0)
    a.barrier()
    a.s('s_lshl_b32', sr(S_T0), sr(S_W), 13)
    a.v('v_add_u32', vr(V_A0), sr(S_T0), vr(V_OFF))
    a.v('v_add_u32', vr(V_A0 + 1), 65536, vr(V_A0))
    a.v('v_add_u32', vr(V_A0 + 2), 131072, vr(V_A0))
    V_O = V_A0 + 3
    a.v('v_and_b32', vr(V_O), 15, vr(V_L))
    a.s('s_lshl_b32', sr(S_T0), sr(S_QG), 6)
    a.s('s_and_b32', sr(S_T1), sr(S_W), 3)
    a.s('s_lshl_b32', sr(S_T1), sr(S_T1), 4)
    a.s('s_add_u32', sr(S_T0), sr(S_T0), sr(S_T1))
    a.v('v_add_u32', vr(V_O), sr(S_T0), vr(V_O))
    a.v('v_mul_u32_u24', vr(V_O), 2560, vr(V_O))
    a.v('v_lshrrev_b32', vr(V_O + 1), 4, vr(V_L))
    a.v('v_lshl_add_u32', vr(V_O), vr(V_O + 1), 3, vr(V_O))
    a.s('s_mul_i32', sr(S_T0), sr(S_BLK), 1280)
    a.s('s_mul_i32', sr(S_T1), sr(S_NG), 160)
    a.s('s_add_u32', sr(S_T0), sr(S_T0), sr(S_T1))
    a.s('s_lshr_b32', sr(S_T1), sr(S_W), 2)
    a.s('s_lshl_b32', sr(S_T1), sr(S_T1), 5)
    a.s('s_add_u32', sr(S_T0), sr(S_T0), sr(S_T1))
    V_R = V_ACC
    for k in range(3):
        if k == 2:
            a.s('s_cmp_ge_u32', sr(S_W), 4)
            a.branch('s_cbranch_scc1', 'L_op_done')
        for src in range(8):
            a.dsr('ds_read_b128', vr(V_R + 4 * src, 4), vr(V_A0 + k), src * 1024)
        a.waitcnt(lgkm=0)
        for r in range(4):
            a.v('v_add_f32', vr(V_R + r), vr(V_R + r), vr(V_R + 4 + r))
            a.v('v_add_f32', vr(V_R + 8 + r), vr(V_R + 8 + r), vr(V_R + 12 + r))
            a.v('v_add_f32', vr(V_R + 16 + r), vr(V_R + 16 + r), vr(V_R + 20 + r))
            a.v('v_add_f32', vr(V_R + 24 + r), vr(V_R + 24 + r), vr(V_R + 28 + r))
        for r in range(4):
            a.v('v_add_f32', vr(V_R + r), vr(V_R + r), vr(V_R + 8 + r))
            a.v('v_add_f32', vr(V_R + 16 + r), vr(V_R + 16 + r), vr(V_R + 24 + r))
        for r in range(4):
            a.v('v_add_f32', vr(V_R + r), vr(V_R + r), vr(V_R + 16 + r))
        a.v('v_cvt_pk_bf16_f32', vr(V_R + 40 + 2 * k), vr(V_R), vr(V_R + 1))
        a.v('v_cvt_pk_bf16_f32', vr(V_R + 41 + 2 * k), vr(V_R + 2), vr(V_R + 3))
        a.bstore('buffer_store_dwordx2', vr(V_R + 40 + 2 * k, 2), vr(V_O), sr(SOUT, 4), sr(S_T0), offset=k * 64)
    a.label('L_op_done')
    a.waitcnt(vm=0)
    a.label('L_op_end')
    a.raw('s_endpgm')


def descriptor(name, vgpr, sgpr):
    return f'''.p2align 6
.amdhsa_kernel {name}
  .amdhsa_next_free_vgpr {vgpr}
  .amdhsa_next_free_sgpr {sgpr}
  .amdhsa_accum_offset {(vgpr + 3) // 4 * 4}
  .amdhsa_group_segment_fixed_size 0
  .amdhsa_kernarg_size 104
  .amdhsa_user_sgpr_count 2
  .amdhsa_user_sgpr_kernarg_segment_ptr 1
  .amdhsa_system_sgpr_workgroup_id_x 1
  .amdhsa_float_denorm_mode_32 3
  .amdhsa_float_denorm_mode_16_64 3
.end_amdhsa_kernel
'''


def main(out):
    a1 = Asm()
    gen_attn(a1)
    a1.fix_hazards()
    a1.check_backedge('L_loop', 's_cbranch_scc1 L_loop')
    a2 = Asm()
    gen_oproj(a2)
    a2.fix_hazards()
    hdr = f'''; {NAME}  (generated by work/gen.py)
; @launch kernel=attn_kernel grid=(256,1,1) block=(512,1,1) lds=163840
; @launch kernel=oproj_kernel grid=(256,1,1) block=(512,1,1) lds=163840
.amdgcn_target "amdgcn-amd-amdhsa--gfx950"
.text
'''
    txt = hdr + a1.text() + a2.text() + '.section .rodata,"a"\n' + descriptor('attn_kernel', 256, 96) + descriptor('oproj_kernel', 256, 48)
    open(out, 'w').write(txt)


if __name__ == '__main__':
    main(sys.argv[1] if len(sys.argv) > 1 else f'cdna_kernels/{NAME}.s')
```

```python
import sys, struct, math
from asmlib import Asm, Q, vr, sr

NAME = 'concat_heads__gqa_block_cached__mha_block_cached__near_ridge'
MF32 = 'v_mfma_f32_32x32x16_bf16'
MF16 = 'v_mfma_f32_16x16x32_bf16'

OFRAG_OFF = 0
WFRAG_OFF = 16 << 20
WS_BYTES = 26 << 20

CSCALE = (128 ** -0.5) * math.log2(math.e)
DIAG = '--diag' in sys.argv
OPT = {}
for _a in sys.argv[1:]:
    if _a.startswith('--') and '=' in _a:
        _k, _v = _a[2:].split('=')
        OPT[_k] = int(_v)
if DIAG:
    WS_BYTES = 64 << 20
STAMP_OFF = 32 << 20


def stamp(a, idx, cnt_s=None, niter=0):
    if not DIAG:
        return
    a.waitcnt(lgkm=0)
    a.raw('s_memtime s[100:101]', 'smem')
    a.waitcnt(lgkm=0)
    if cnt_s is None:
        a.s('s_mov_b32', sr(82 + idx), 's100')
    else:
        for j in range(niter):
            a.s('s_cmp_eq_u32', cnt_s, j)
            a.s('s_cselect_b32', sr(82 + idx + j), 's100', sr(82 + idx + j))


def dump_stamps(a, n, sws, s_w, vtmp, s_t, kern):
    if not DIAG:
        return
    a.s('s_lshl_b32', sr(s_t), 's2', 3)
    a.s('s_add_u32', sr(s_t), sr(s_t), sr(s_w))
    a.s('s_lshl_b32', sr(s_t), sr(s_t), 7)
    a.s('s_add_u32', sr(s_t), sr(s_t), STAMP_OFF + kern * (1 << 20))
    a.v('v_mov_b32', vr(vtmp + 1), 0)
    for i in range(n):
        a.v('v_mov_b32', vr(vtmp), sr(82 + i))
        a.bstore('buffer_store_dword', vr(vtmp), vr(vtmp + 1), sr(sws, 4), sr(s_t), offset=4 * i)
    a.waitcnt(vm=0)


def f32bits(x):
    return struct.unpack('<I', struct.pack('<f', x))[0]


def srd(a, base_sr, ptr_sr, off_s, nbytes):
    if off_s is None:
        a.s('s_mov_b32', sr(base_sr), sr(ptr_sr))
        a.s('s_mov_b32', sr(base_sr + 1), sr(ptr_sr + 1))
    else:
        a.s('s_add_u32', sr(base_sr), sr(ptr_sr), off_s)
        a.s('s_addc_u32', sr(base_sr + 1), sr(ptr_sr + 1), 0)
    a.s('s_mov_b32', sr(base_sr + 2), nbytes)
    a.s('s_mov_b32', sr(base_sr + 3), '0x00020000')


def mfma_stream(a, lq, items, frags, fillers=None, fill_per=0):
    D = len(frags)
    n = len(items)
    fillers = list(fillers or [])

    def issue(k):
        fb = frags[k % D]
        for (op, ro, nr, addr, off) in items[k][0]:
            a.dsr(op, vr(fb + ro, nr), addr, off)
            lq.issue(('f', k))

    pre = min(D - 1, n)
    for k in range(pre):
        issue(k)
    for k in range(n):
        if k + pre < n:
            issue(k + pre)
        lq.wait_for(('f', k))
        items[k][1](frags[k % D])
        for _ in range(fill_per):
            if fillers:
                fillers.pop(0)()
    for f in fillers:
        f()


def gen_attn(a):
    K = 'attn_kernel'
    a.raw('.globl ' + K); a.raw('.p2align 8'); a.raw(f'.type {K},@function')
    a.label(K)
    KVMOD = 'nt' if OPT.get('kvnt', 1) else ''
    XWMOD = 'nt' if OPT.get('xwnt', 0) else ''
    S_W, S_HF, S_WQ, S_BLK, S_H, S_B, S_T0, S_T1 = 3, 4, 5, 6, 7, 8, 9, 10
    SX, SWQ, SK, SV, SKO, SVO, SWO, SWS = 12, 16, 20, 24, 28, 32, 36, 40
    P0 = 44
    S_HB, S_RD, S_WR, S_KOFF, S_VOFF, S_CNT, S_C, S_M0B, S_T2, S_T3 = 70, 71, 72, 73, 74, 75, 76, 77, 78, 79
    S_SO = 54
    S_W2K = 60
    V_T, V_L, V_DV, V_DW = 0, 1, 2, 3
    V_DK = 4
    V_WA = 8
    V_FR = 16
    V_QA = 32
    V_SA = 96
    V_PF = 160
    V_KB = 192
    V_VB = 200
    V_M, V_LS, V_MC, V_AL, V_T0, V_T1, V_T2, V_T3 = range(204, 212)
    V_FR2 = 212
    V_QF = 224
    V_G = 96
    V_GP = 136
    V_XA = 160
    V_DX = 164
    V_XFR = 168
    V_WFR = 184

    a.s('s_cmp_ge_u32', 's2', 256)
    a.branch('s_cbranch_scc1', 'L_attn_end')
    a.s('s_load_dwordx16', sr(P0, 16), 's[0:1]', 0)
    a.s('s_load_dwordx4', sr(60, 4), 's[0:1]', 64)
    a.s('s_load_dwordx2', sr(68, 2), 's[0:1]', 96)
    a.v('v_lshrrev_b32', vr(2), 6, 'v0')
    a.v('v_and_b32', vr(V_L), 63, 'v0')
    a.v('v_readfirstlane_b32', sr(S_W), vr(2))
    a.s('s_lshr_b32', sr(S_HF), sr(S_W), 2)
    a.s('s_and_b32', sr(S_WQ), sr(S_W), 3)
    a.s('s_and_b32', sr(S_T0), 's2', 7)
    a.s('s_lshr_b32', sr(S_BLK), sr(S_T0), 2)
    a.s('s_and_b32', sr(S_T0), sr(S_T0), 3)
    a.s('s_lshl_b32', sr(S_T0), sr(S_T0), 3)
    a.s('s_lshr_b32', sr(S_T1), 's2', 3)
    a.s('s_and_b32', sr(S_H), sr(S_T1), 7)
    a.s('s_add_u32', sr(S_H), sr(S_H), sr(S_T0))
    a.s('s_lshr_b32', sr(S_B), sr(S_T1), 3)
    a.s('s_lshl_b32', sr(S_B), sr(S_B), 1)
    a.s('s_add_u32', sr(S_B), sr(S_B), sr(S_HF))
    a.s('s_mul_i32', sr(S_HB), sr(S_HF), 81920)
    a.s('s_lshl_b32', sr(S_T0), sr(S_WQ), 12)
    a.s('s_add_u32', sr(S_M0B), sr(S_HB), sr(S_T0))
    a.s('s_mov_b32', sr(S_C), hex(f32bits(CSCALE)))

    a.v('v_lshrrev_b32', vr(16), 4, vr(V_L))
    a.v('v_and_b32', vr(17), 15, vr(V_L))
    a.v('v_lshlrev_b32', vr(18), 2, vr(16))
    a.v('v_xor_b32', vr(18), vr(18), vr(17))
    a.v('v_lshlrev_b32', vr(18), 4, vr(18))
    a.v('v_lshl_add_u32', vr(V_DV), vr(16), 8, vr(18))
    a.v('v_lshl_add_u32', vr(V_DW), vr(16), 13, vr(18))
    for i in range(4):
        a.v('v_add_u32', vr(18), 4 * i, vr(16))
        a.v('v_xor_b32', vr(18), vr(18), vr(17))
        a.v('v_lshlrev_b32', vr(18), 4, vr(18))
        a.v('v_lshl_add_u32', vr(V_DK + i), vr(16), 8, vr(18))
    a.v('v_lshrrev_b32', vr(18), 2, vr(V_L))
    a.v('v_mul_u32_u24', vr(18), 1280, vr(18))
    a.v('v_and_b32', vr(19), 3, vr(V_L))
    a.v('v_xor_b32', vr(19), vr(19), vr(16))
    a.v('v_lshl_add_u32', vr(V_DX), vr(19), 4, vr(18))
    a.v('v_and_b32', vr(18), 31, vr(V_L))
    a.v('v_bfe_u32', vr(19), vr(V_L), 2, 2)
    a.v('v_lshrrev_b32', vr(20), 5, vr(V_L))
    a.v('v_xor_b32', vr(19), vr(19), vr(20))
    a.v('v_lshlrev_b32', vr(19), 4, vr(19))
    a.v('v_lshl_add_u32', vr(18), vr(18), 6, vr(19))
    a.s('s_lshl_b32', sr(S_T0), sr(S_W), 11)
    a.s('s_add_u32', sr(S_T0), sr(S_T0), 8192)
    a.v('v_add_u32', vr(V_XA), sr(S_T0), vr(18))
    a.v('v_xor_b32', vr(V_XA + 1), 32, vr(V_XA))
    a.v('v_add_u32', vr(V_XA + 2), 81920, vr(V_XA))
    a.v('v_add_u32', vr(V_XA + 3), 81920, vr(V_XA + 1))

    def tr_base(dst):
        a.v('v_lshrrev_b32', vr(16), 5, vr(V_L))
        a.v('v_bfe_u32', vr(17), vr(V_L), 2, 2)
        a.v('v_bfe_u32', vr(18), vr(V_L), 4, 1)
        a.v('v_and_b32', vr(19), 1, vr(V_L))
        a.v('v_bfe_u32', vr(20), vr(V_L), 1, 1)
        a.v('v_lshl_add_u32', vr(21), vr(16), 3, vr(17))
        a.v('v_lshlrev_b32', vr(21), 8, vr(21))
        a.v('v_lshlrev_b32', vr(17), 2, vr(17))
        a.v('v_lshl_add_u32', vr(17), vr(18), 1, vr(17))
        a.v('v_add_u32', vr(17), vr(17), vr(19))
        a.v('v_lshl_add_u32', vr(21), vr(17), 4, vr(21))
        a.v('v_lshl_add_u32', vr(dst), vr(20), 3, vr(21))

    tr_base(22)
    for t in range(4):
        a.v('v_xor_b32', vr(V_WA + t), t << 6, vr(22))
        a.v('v_add_u32', vr(V_WA + 4 + t), 81920, vr(V_WA + t))

    a.waitcnt(lgkm=0)
    a.s('s_cmp_eq_u32', sr(S_BLK), 0)
    a.s('s_cselect_b64', sr(44, 2), sr(44, 2), sr(54, 2))
    a.s('s_cselect_b64', sr(46, 2), sr(46, 2), sr(56, 2))
    a.s('s_cselect_b64', sr(48, 2), sr(48, 2), sr(58, 2))
    a.s('s_cselect_b64', sr(50, 2), sr(50, 2), sr(60, 2))
    a.s('s_cselect_b64', sr(52, 2), sr(52, 2), sr(62, 2))
    a.s('s_and_b32', sr(S_T0), sr(S_B), 6)
    a.s('s_mul_i32', sr(S_T0), sr(S_T0), 163840)
    srd(a, SX, 44, sr(S_T0), 327680)
    a.s('s_lshl_b32', sr(S_T0), sr(S_H), 8)
    srd(a, SWQ, 50, sr(S_T0), 5242880 - 8192 + 256)
    a.s('s_lshl_b32', sr(S_T0), sr(S_B), 5)
    a.s('s_add_u32', sr(S_T0), sr(S_T0), sr(S_H))
    a.s('s_lshl_b32', sr(S_T0), sr(S_T0), 17)
    srd(a, SK, 46, sr(S_T0), 131072)
    srd(a, SV, 48, sr(S_T0), 131072)
    a.s('s_xor_b32', sr(S_T0), sr(S_T0), 32 << 17)
    srd(a, SKO, 46, sr(S_T0), 131072)
    srd(a, SVO, 48, sr(S_T0), 131072)
    srd(a, SWO, 52, None, 5242880)
    srd(a, SWS, 68, None, WS_BYTES)

    a.s('s_lshl_b32', sr(S_T0), sr(S_WQ), 12)
    a.s('s_add_u32', sr(S_KOFF), sr(S_T0), 32768)
    a.s('s_add_u32', sr(S_VOFF), sr(S_T0), 32768)
    a.s('s_mov_b32', sr(S_RD), 49152)
    a.s('s_mov_b32', sr(S_WR), 32768)
    a.s('s_lshl_b32', sr(S_W2K), sr(S_WQ), 11)
    a.s('s_lshl_b32', sr(S_SO), sr(S_WQ), 16)
    a.s('s_add_u32', sr(S_SO + 1), sr(S_SO), 4 * 8192 - 1024)
    a.s('s_mul_i32', sr(S_SO + 2), sr(S_WQ), 32 * 1280)
    a.s('s_add_u32', sr(S_SO + 3), sr(S_SO + 2), 16 * 1280 - 1024)
    a.s('s_add_u32', sr(S_SO + 4), sr(S_SO + 2), 163840)
    a.s('s_add_u32', sr(S_SO + 5), sr(S_SO + 3), 163840)

    SB = [0, 81920, 24576, 106496]
    NST = 20

    def stage_dma(vq, s_):
        sb = SB[s_ % 4]
        for g in range(3):
            a.s('s_add_u32', sr(S_T0), sr(S_W2K), sb + g * 8192)
            a.s('s_mov_b32', 'm0', sr(S_T0))
            for i in range(2):
                so = S_SO + 2 * g + i
                a.dma(vr(V_DW) if g == 0 else vr(V_DX), sr(SWQ if g == 0 else SX, 4), sr(so), offset=i * 1024, mods=XWMOD)
                vq.issue(('S', s_))
                a.s('s_add_u32', sr(so), sr(so), 32 * 8192 if g == 0 else 64)

    def kvdma(vq, isk, srd_, soff, m0expr_s, tag):
        a.s('s_mov_b32', 'm0', m0expr_s)
        for i in range(4):
            a.dma(vr(V_DK + i) if isk else vr(V_DV), sr(srd_, 4), soff, offset=i * 1024, mods=KVMOD)
            vq.issue(tag)

    def gather(vq):
        a.v('v_lshrrev_b32', vr(V_T), 4, vr(V_L))
        a.v('v_mul_u32_u24', vr(V_T), 10240, vr(V_T))
        a.v('v_and_b32', vr(V_GP), 15, vr(V_L))
        a.v('v_lshl_add_u32', vr(V_T), vr(V_GP), 1, vr(V_T))
        a.s('s_lshl_b32', sr(S_T0), sr(S_H), 2)
        a.s('s_add_u32', sr(S_T0), sr(S_T0), sr(S_WQ))
        a.s('s_mul_i32', sr(S_T0), sr(S_T0), 40960)
        a.s('s_mul_i32', sr(S_T1), sr(S_B), 160)
        a.s('s_add_u32', sr(S_T0), sr(S_T0), sr(S_T1))
        a.s('s_add_u32', sr(S_T1), sr(S_T0), 5120)
        for i in range(5):
            for j in range(8):
                a.bload('buffer_load_ushort', vr(V_G + 8 * i + j), vr(V_T), sr(SWO, 4),
                        sr(S_T0) if j < 4 else sr(S_T1), offset=(j & 3) * 1280 + i * 32)
                vq.issue(('g', 0))

    def qproj(role):
        vq = Q(a, 'vm', 63)
        lq = Q(a, 'lgkm', 15)
        if role == 'L':
            for s_ in range(4):
                stage_dma(vq, s_)
        KVST = OPT.get('kvst', -1)
        pend = []
        if role == 'P':
            for ci in range(2):
                for own in (0, 1):
                    def f(ci=ci, own=own):
                        a.s('s_lshl_b32', sr(S_T0), sr(S_WQ), 12)
                        a.s('s_add_u32', sr(S_T1), sr(S_T0), (81920 if own else 0) + (ci + 3) * 16384)
                        a.s('s_add_u32', sr(S_T2), sr(S_T0), ci * 16384)
                        kvdma(vq, True, SK if own else SKO, sr(S_T2), sr(S_T1), ('kv', 0))
                    pend.append(f)
            if KVST < 0:
                for f in pend:
                    f()
                pend = []
        stamp(a, 1)
        wfr = [V_FR + 4 * k for k in range(4)] + [V_WFR + 4 * k for k in range(4)]
        for s_ in range(NST):
            vq.wait_for(('S', s_))
            a.barrier()
            if s_ == 0:
                stamp(a, 2)
            if s_ == 10:
                stamp(a, 3)
            if role == 'L' and s_ >= 1 and s_ + 3 < NST:
                stage_dma(vq, s_ + 3)
            if pend and s_ >= KVST and (s_ - KVST) % OPT.get('kvstep', 1) == 0:
                pend.pop(0)()
            if s_ == 16:
                gather(vq)
            if s_ == 18:
                a.s('s_lshl_b32', sr(S_T2), sr(S_WQ), 12)
                kvdma(vq, False, SV, sr(S_T2), sr(S_M0B), ('c2', 0))
            sb = SB[s_ % 4]
            hi_ = sb >= 81920
            base = sb - 81920 if hi_ else sb
            xb = V_XFR + 8 * (s_ % 2)
            for u in range(2):
                a.dsr('ds_read_b128', vr(xb + 4 * u, 4), vr(V_XA + (2 if hi_ else 0) + u), base)
                lq.issue(('x', u))
            items = []
            for u in range(2):
                for t in range(4):
                    ab = V_WA + (4 if hi_ else 0) + t
                    reads = [('ds_read_b64_tr_b16', 2 * e, 2, vr(ab), base + u * 4096 + e * 1024) for e in range(2)]
                    first = (s_ == 0 and u == 0)

                    def mf(fb, t=t, u=u, first=first):
                        a.mfma(MF32, vr(V_QA + 16 * t, 16), vr(fb, 4), vr(xb + 4 * u, 4),
                               0 if first else vr(V_QA + 16 * t, 16))
                    items.append((reads, mf))
            mfma_stream(a, lq, items, wfr[:7])
        stamp(a, 4)
        a.barrier()
        a.s('s_lshl_b32', sr(S_T2), sr(S_WQ), 12)
        a.s('s_add_u32', sr(S_T2), sr(S_T2), 16384)
        a.s('s_add_u32', sr(S_T1), sr(S_M0B), 16384)
        kvdma(vq, False, SV, sr(S_T2), sr(S_T1), ('c3', 0))
        for t in range(4):
            for hh in range(2):
                for k in range(4):
                    a.v('v_cvt_pk_bf16_f32', vr(V_QF + 4 * (2 * t + hh) + k),
                        vr(V_QA + 16 * t + 8 * hh + 2 * k), vr(V_QA + 16 * t + 8 * hh + 2 * k + 1))
        vq.wait_for(('g', 0))
        for i in range(5):
            for k in range(4):
                a.v('v_lshl_or_b32', vr(V_GP + 4 * i + k), vr(V_G + 8 * i + 2 * k + 1), 16, vr(V_G + 8 * i + 2 * k))
        a.v('v_lshlrev_b32', vr(V_T), 4, vr(V_L))
        a.s('s_mul_i32', sr(S_T0), sr(S_BLK), 40)
        a.s('s_mul_i32', sr(S_T1), sr(S_B), 5)
        a.s('s_add_u32', sr(S_T0), sr(S_T0), sr(S_T1))
        a.s('s_lshl_b32', sr(S_T0), sr(S_T0), 7)
        a.s('s_lshl_b32', sr(S_T1), sr(S_H), 2)
        a.s('s_add_u32', sr(S_T0), sr(S_T0), sr(S_T1))
        a.s('s_add_u32', sr(S_T0), sr(S_T0), sr(S_WQ))
        a.s('s_lshl_b32', sr(S_T0), sr(S_T0), 10)
        a.s('s_add_u32', sr(S_T0), sr(S_T0), WFRAG_OFF)
        for i in range(5):
            if i:
                a.s('s_add_u32', sr(S_T0), sr(S_T0), 131072)
            a.bstore('buffer_store_dwordx4', vr(V_GP + 4 * i, 4), vr(V_T), sr(SWS, 4), sr(S_T0))
            vq.issue(('st', 0))
        return vq

    stamp(a, 0)
    a.s('s_cmp_ge_u32', sr(S_W), 4)
    a.branch('s_cbranch_scc1', 'L_roleP')
    q1 = qproj('L')
    a.branch('s_branch', 'L_join')
    a.label('L_roleP')
    q2 = qproj('P')
    a.label('L_join')
    assert q1.q == q2.q, (q1.q, q2.q)
    a.nop(7)
    stamp(a, 5)

    a.v('v_and_b32', vr(16), 0x13, vr(V_L))
    a.v('v_bfe_u32', vr(17), vr(V_L), 2, 1)
    a.v('v_lshl_add_u32', vr(16), vr(17), 3, vr(16))
    a.v('v_bfe_u32', vr(17), vr(V_L), 3, 1)
    a.v('v_lshl_add_u32', vr(16), vr(17), 2, vr(16))
    a.v('v_lshrrev_b32', vr(17), 5, vr(V_L))
    a.v('v_and_b32', vr(18), 15, vr(16))
    a.v('v_xor_b32', vr(17), vr(17), vr(18))
    a.v('v_lshlrev_b32', vr(17), 4, vr(17))
    a.v('v_lshl_add_u32', vr(16), vr(16), 8, vr(17))
    for d in range(8):
        a.v('v_xor_b32', vr(17), d << 5, vr(16))
        a.v('v_add_u32', vr(V_KB + d), sr(S_HB), vr(17))
    for t in range(4):
        a.v('v_add_u32', vr(V_VB + t), sr(S_HB), vr(V_WA + t))
    for r in range(64):
        a.v('v_mov_b32', vr(V_QA + r), 0)
    a.v('v_mov_b32', vr(V_M), '0xff800000')
    a.v('v_mov_b32', vr(V_LS), 0)
    a.s('s_mov_b32', sr(S_CNT), 0)

    frags = [V_FR + 4 * k for k in range(4)] + [V_FR2 + 4 * k for k in range(3)]
    V_CUR = V_WA
    lq = Q(a, 'lgkm', 15)

    a.label('L_loop')
    stamp(a, 6, sr(S_CNT), 4)
    for st in range(4):
        isk = st < 2
        a.waitcnt(vm=12)
        a.barrier()
        a.s('s_add_u32', sr(S_T0), sr(S_M0B), sr(S_WR))
        dummy = Q(a, 'vm', 63)
        kvdma(dummy, isk, SK if isk else SV, sr(S_KOFF if isk else S_VOFF), sr(S_T0), None)
        a.s('s_add_u32', sr(S_KOFF if isk else S_VOFF), sr(S_KOFF if isk else S_VOFF), 16384)
        a.s('s_add_u32', sr(S_WR), sr(S_WR), 16384)
        a.s('s_cmp_eq_u32', sr(S_WR), 81920)
        a.s('s_cselect_b32', sr(S_WR), 0, sr(S_WR))
        if isk:
            for d in range(8):
                a.v('v_add_u32', vr(V_CUR + d), sr(S_RD), vr(V_KB + d))
        else:
            for t in range(4):
                a.v('v_add_u32', vr(V_CUR + t), sr(S_RD), vr(V_VB + t))
        a.s('s_add_u32', sr(S_RD), sr(S_RD), 16384)
        a.s('s_cmp_eq_u32', sr(S_RD), 81920)
        a.s('s_cselect_b32', sr(S_RD), 0, sr(S_RD))
        items = []
        if isk:
            for kt in range(2):
                for d in range(8):
                    reads = [('ds_read_b128', 0, 4, vr(V_CUR + d), kt * 8192)]
                    acc = V_SA + 16 * (2 * st + kt)

                    def mf(fb, acc=acc, d=d):
                        a.mfma(MF32, vr(acc, 16), vr(fb, 4), vr(V_QF + 4 * d, 4), 0 if d == 0 else vr(acc, 16))
                    items.append((reads, mf))
        else:
            for u in range(4):
                for t in range(4):
                    reads = [('ds_read_b64_tr_b16', 2 * e, 2, vr(V_CUR + t), u * 4096 + e * 1024) for e in range(2)]
                    pu = 4 * (st - 2) + u

                    def mf(fb, t=t, pu=pu):
                        a.mfma(MF32, vr(V_QA + 16 * t, 16), vr(fb, 4), vr(V_PF + 4 * pu, 4), vr(V_QA + 16 * t, 16))
                    items.append((reads, mf))
        mfma_stream(a, lq, items, frags)
        if st == 1:
            ch = [V_T0, V_T1, V_T2, V_T3]
            for c4 in range(4):
                b0 = V_SA + 16 * c4
                a.v('v_max3_f32', vr(ch[c4]), vr(b0), vr(b0 + 1), vr(b0 + 2))
            for k in range(3, 15, 2):
                for c4 in range(4):
                    b0 = V_SA + 16 * c4
                    a.v('v_max3_f32', vr(ch[c4]), vr(ch[c4]), vr(b0 + k), vr(b0 + k + 1))
            for c4 in range(4):
                b0 = V_SA + 16 * c4
                a.v('v_max_f32', vr(ch[c4]), vr(ch[c4]), vr(b0 + 15))
            a.v('v_max3_f32', vr(V_T0), vr(V_T0), vr(V_T1), vr(V_T2))
            a.v('v_max_f32', vr(V_T0), vr(V_T0), vr(V_T3))
            a.v('v_mov_b32', vr(V_T1), vr(V_T0))
            a.v('v_permlane32_swap_b32', vr(V_T0), vr(V_T1))
            a.v('v_max3_f32', vr(V_T0), vr(V_T0), vr(V_T1), vr(V_M))
            a.v('v_sub_f32', vr(V_T1), vr(V_M), vr(V_T0))
            a.v('v_mul_f32', vr(V_T1), sr(S_C), vr(V_T1))
            a.v('v_exp_f32', vr(V_AL), vr(V_T1))
            a.v('v_mul_f32', vr(V_MC), sr(S_C), vr(V_T0))
            a.v('v_mov_b32', vr(V_M), vr(V_T0))
            for r in range(64):
                a.v('v_fma_f32', vr(V_SA + r), vr(V_SA + r), sr(S_C), '-' + vr(V_MC))
            for r in range(64):
                a.v('v_exp_f32', vr(V_SA + r), vr(V_SA + r))
            a.v('v_mul_f32', vr(V_LS), vr(V_LS), vr(V_AL))
            for c4 in range(4):
                b0 = V_SA + 16 * c4
                a.v('v_add_f32', vr(ch[c4]), vr(b0), vr(b0 + 1))
            for k in range(2, 16):
                for c4 in range(4):
                    b0 = V_SA + 16 * c4
                    a.v('v_add_f32', vr(ch[c4]), vr(ch[c4]), vr(b0 + k))
            a.v('v_add_f32', vr(V_T0), vr(V_T0), vr(V_T1))
            a.v('v_add_f32', vr(V_T2), vr(V_T2), vr(V_T3))
            a.v('v_add_f32', vr(V_T0), vr(V_T0), vr(V_T2))
            a.v('v_add_f32', vr(V_LS), vr(V_LS), vr(V_T0))
            for k in range(32):
                a.v('v_cvt_pk_bf16_f32', vr(V_PF + k), vr(V_SA + 2 * k), vr(V_SA + 2 * k + 1))
            for r in range(64):
                a.v('v_mul_f32', vr(V_QA + r), vr(V_AL), vr(V_QA + r))
            stamp(a, 10, sr(S_CNT), 4)
    a.s('s_add_u32', sr(S_CNT), sr(S_CNT), 1)
    a.s('s_cmp_lt_u32', sr(S_CNT), 4)
    a.branch('s_cbranch_scc1', 'L_loop')

    stamp(a, 14)
    a.v('v_mov_b32', vr(V_T1), vr(V_LS))
    a.v('v_permlane32_swap_b32', vr(V_LS), vr(V_T1))
    a.v('v_add_f32', vr(V_LS), vr(V_LS), vr(V_T1))
    a.v('v_rcp_f32', vr(V_AL), vr(V_LS))
    a.v('v_bfe_u32', vr(V_T0), vr(V_L), 4, 1)
    a.v('v_lshlrev_b32', vr(V_T0), 17, vr(V_T0))
    a.v('v_lshrrev_b32', vr(V_T1), 5, vr(V_L))
    a.v('v_lshl_add_u32', vr(V_T0), vr(V_T1), 8, vr(V_T0))
    a.v('v_and_b32', vr(V_T1), 15, vr(V_L))
    a.v('v_lshl_add_u32', vr(V_T0), vr(V_T1), 4, vr(V_T0))
    a.s('s_lshl_b32', sr(S_T0), sr(S_BLK), 6)
    a.s('s_lshl_b32', sr(S_T1), sr(S_B), 3)
    a.s('s_add_u32', sr(S_T0), sr(S_T0), sr(S_T1))
    a.s('s_lshl_b32', sr(S_T1), sr(S_WQ), 1)
    a.s('s_add_u32', sr(S_T0), sr(S_T0), sr(S_T1))
    a.s('s_lshl_b32', sr(S_T0), sr(S_T0), 7)
    a.s('s_lshl_b32', sr(S_T1), sr(S_H), 2)
    a.s('s_add_u32', sr(S_T0), sr(S_T0), sr(S_T1))
    a.s('s_lshl_b32', sr(S_T0), sr(S_T0), 10)
    for t in range(4):
        for r in range(16):
            a.v('v_mul_f32', vr(V_QA + 16 * t + r), vr(V_AL), vr(V_QA + 16 * t + r))
        for k in range(8):
            a.v('v_cvt_pk_bf16_f32', vr(V_SA + 8 * t + k), vr(V_QA + 16 * t + 2 * k), vr(V_QA + 16 * t + 2 * k + 1))
        for hh in range(2):
            a.bstore('buffer_store_dwordx4', vr(V_SA + 8 * t + 4 * hh, 4), vr(V_T0), sr(SWS, 4), sr(S_T0),
                     offset=t * 1024 + hh * 512)
    a.waitcnt(vm=0)
    stamp(a, 15)
    dump_stamps(a, 16, SWS, S_W, V_T0, S_T0, 0)
    a.label('L_attn_end')
    a.raw('s_endpgm')


def gen_oproj(a):
    K = 'oproj_kernel'
    a.raw('.globl ' + K); a.raw('.p2align 8'); a.raw(f'.type {K},@function')
    a.label(K)
    S_W, S_BLK, S_QG, S_NG, S_T0, S_T1 = 3, 4, 5, 6, 7, 8
    SWS, SOUT = 12, 16
    SA = 24
    SB = 30
    V_L, V_OFF = 1, 2
    V_ACC = 8
    V_ST = 96
    a.s('s_cmp_ge_u32', 's2', 256)
    a.branch('s_cbranch_scc1', 'L_op_end')
    a.s('s_load_dwordx2', sr(20, 2), 's[0:1]', 96)
    a.s('s_load_dwordx2', sr(22, 2), 's[0:1]', 80)
    a.v('v_lshrrev_b32', vr(6), 6, 'v0')
    a.v('v_and_b32', vr(V_L), 63, 'v0')
    a.v('v_readfirstlane_b32', sr(S_W), vr(6))
    a.s('s_and_b32', sr(S_T0), 's2', 7)
    a.s('s_lshr_b32', sr(S_BLK), sr(S_T0), 2)
    a.s('s_and_b32', sr(S_T0), sr(S_T0), 3)
    a.s('s_lshl_b32', sr(S_T0), sr(S_T0), 2)
    a.s('s_lshr_b32', sr(S_T1), 's2', 3)
    a.s('s_and_b32', sr(S_NG), sr(S_T1), 7)
    a.s('s_lshr_b32', sr(S_QG), sr(S_T1), 3)
    a.s('s_add_u32', sr(S_QG), sr(S_QG), sr(S_T0))
    a.v('v_lshlrev_b32', vr(V_OFF), 4, vr(V_L))
    for k in range(1, 4):
        a.v('v_add_u32', vr(V_OFF + k), 4096 * k, vr(V_OFF))
    a.s('s_mul_i32', sr(S_T0), sr(S_BLK), 40)
    a.s('s_mul_i32', sr(S_T1), sr(S_NG), 5)
    a.s('s_add_u32', sr(S_T0), sr(S_T0), sr(S_T1))
    a.s('s_lshl_b32', sr(S_T0), sr(S_T0), 17)
    a.s('s_lshl_b32', sr(S_T1), sr(S_W), 14)
    a.s('s_add_u32', sr(S_T0), sr(S_T0), sr(S_T1))
    for i in range(5):
        a.s('s_add_u32', sr(SA + i), sr(S_T0), WFRAG_OFF + i * 131072)
    a.s('s_lshl_b32', sr(S_T0), sr(S_BLK), 6)
    a.s('s_lshl_b32', sr(9), sr(S_QG), 2)
    a.s('s_add_u32', sr(S_T0), sr(S_T0), sr(9))
    a.s('s_lshl_b32', sr(S_T0), sr(S_T0), 17)
    a.s('s_add_u32', sr(S_T0), sr(S_T0), sr(S_T1))
    for j in range(4):
        a.s('s_add_u32', sr(SB + j), sr(S_T0), OFRAG_OFF + j * 131072)
    a.waitcnt(lgkm=0)
    srd(a, SWS, 20, None, WS_BYTES)
    srd(a, SOUT, 22, None, 1024 * 2560)

    vq = Q(a, 'vm', 63)

    def issue(ks):
        st = V_ST + 36 * (ks % 4)
        for i in range(5):
            a.bload('buffer_load_dwordx4', vr(st + 4 * i, 4), vr(V_OFF + ks // 4), sr(SWS, 4), sr(SA + i),
                    offset=(ks % 4) * 1024)
            vq.issue(('k', ks))
        for j in range(4):
            a.bload('buffer_load_dwordx4', vr(st + 20 + 4 * j, 4), vr(V_OFF + ks // 4), sr(SWS, 4), sr(SB + j),
                    offset=(ks % 4) * 1024)
            vq.issue(('k', ks))

    stamp(a, 0)
    for ks in range(4):
        issue(ks)
    stamp(a, 1)
    for ks in range(16):
        vq.wait_for(('k', ks))
        if ks == 0:
            stamp(a, 2)
        st = V_ST + 36 * (ks % 4)
        for i in range(5):
            for j in range(4):
                acc = V_ACC + 4 * (4 * i + j)
                a.mfma(MF16, vr(acc, 4), vr(st + 4 * i, 4), vr(st + 20 + 4 * j, 4), 0 if ks == 0 else vr(acc, 4))
        if ks + 4 < 16:
            issue(ks + 4)
    stamp(a, 3)
    V_A0 = V_ST
    a.s('s_lshl_b32', sr(S_T0), sr(S_W), 10)
    a.v('v_add_u32', vr(V_A0), sr(S_T0), vr(V_OFF))
    a.v('v_add_u32', vr(V_A0 + 1), 65536, vr(V_A0))
    a.v('v_add_u32', vr(V_A0 + 2), 131072, vr(V_A0))
    for tl in range(20):
        a.dsw('ds_write_b128', vr(V_A0 + tl // 8), vr(V_ACC + 4 * tl, 4), (tl % 8) * 8192)
    a.waitcnt(lgkm=0)
    a.barrier()
    stamp(a, 4)
    a.s('s_lshl_b32', sr(S_T0), sr(S_W), 13)
    a.v('v_add_u32', vr(V_A0), sr(S_T0), vr(V_OFF))
    a.v('v_add_u32', vr(V_A0 + 1), 65536, vr(V_A0))
    a.v('v_add_u32', vr(V_A0 + 2), 131072, vr(V_A0))
    V_O = V_A0 + 3
    a.v('v_and_b32', vr(V_O), 15, vr(V_L))
    a.s('s_lshl_b32', sr(S_T0), sr(S_QG), 6)
    a.s('s_and_b32', sr(S_T1), sr(S_W), 3)
    a.s('s_lshl_b32', sr(S_T1), sr(S_T1), 4)
    a.s('s_add_u32', sr(S_T0), sr(S_T0), sr(S_T1))
    a.v('v_add_u32', vr(V_O), sr(S_T0), vr(V_O))
    a.v('v_mul_u32_u24', vr(V_O), 2560, vr(V_O))
    a.v('v_lshrrev_b32', vr(V_O + 1), 4, vr(V_L))
    a.v('v_lshl_add_u32', vr(V_O), vr(V_O + 1), 3, vr(V_O))
    a.s('s_mul_i32', sr(S_T0), sr(S_BLK), 1280)
    a.s('s_mul_i32', sr(S_T1), sr(S_NG), 160)
    a.s('s_add_u32', sr(S_T0), sr(S_T0), sr(S_T1))
    a.s('s_lshr_b32', sr(S_T1), sr(S_W), 2)
    a.s('s_lshl_b32', sr(S_T1), sr(S_T1), 5)
    a.s('s_add_u32', sr(S_T0), sr(S_T0), sr(S_T1))
    V_R = V_ACC
    for k in range(3):
        if k == 2:
            a.s('s_cmp_ge_u32', sr(S_W), 4)
            a.branch('s_cbranch_scc1', 'L_op_done')
        for src in range(8):
            a.dsr('ds_read_b128', vr(V_R + 4 * src, 4), vr(V_A0 + k), src * 1024)
        a.waitcnt(lgkm=0)
        for r in range(4):
            a.v('v_add_f32', vr(V_R + r), vr(V_R + r), vr(V_R + 4 + r))
            a.v('v_add_f32', vr(V_R + 8 + r), vr(V_R + 8 + r), vr(V_R + 12 + r))
            a.v('v_add_f32', vr(V_R + 16 + r), vr(V_R + 16 + r), vr(V_R + 20 + r))
            a.v('v_add_f32', vr(V_R + 24 + r), vr(V_R + 24 + r), vr(V_R + 28 + r))
        for r in range(4):
            a.v('v_add_f32', vr(V_R + r), vr(V_R + r), vr(V_R + 8 + r))
            a.v('v_add_f32', vr(V_R + 16 + r), vr(V_R + 16 + r), vr(V_R + 24 + r))
        for r in range(4):
            a.v('v_add_f32', vr(V_R + r), vr(V_R + r), vr(V_R + 16 + r))
        a.v('v_cvt_pk_bf16_f32', vr(V_R + 40 + 2 * k), vr(V_R), vr(V_R + 1))
        a.v('v_cvt_pk_bf16_f32', vr(V_R + 41 + 2 * k), vr(V_R + 2), vr(V_R + 3))
        a.bstore('buffer_store_dwordx2', vr(V_R + 40 + 2 * k, 2), vr(V_O), sr(SOUT, 4), sr(S_T0), offset=k * 64)
    a.label('L_op_done')
    a.waitcnt(vm=0)
    stamp(a, 5)
    dump_stamps(a, 6, SWS, S_W, V_A0, S_T0, 1)
    a.label('L_op_end')
    a.raw('s_endpgm')


def descriptor(name, vgpr, sgpr):
    return f'''.p2align 6
.amdhsa_kernel {name}
  .amdhsa_next_free_vgpr {vgpr}
  .amdhsa_next_free_sgpr {sgpr}
  .amdhsa_accum_offset {(vgpr + 3) // 4 * 4}
  .amdhsa_group_segment_fixed_size 0
  .amdhsa_kernarg_size 104
  .amdhsa_user_sgpr_count 2
  .amdhsa_user_sgpr_kernarg_segment_ptr 1
  .amdhsa_system_sgpr_workgroup_id_x 1
  .amdhsa_float_denorm_mode_32 3
  .amdhsa_float_denorm_mode_16_64 3
.end_amdhsa_kernel
'''


def main(out):
    a1 = Asm()
    gen_attn(a1)
    a1.fix_hazards()
    a1.check_backedge('L_loop', 's_cbranch_scc1 L_loop')
    a2 = Asm()
    gen_oproj(a2)
    a2.fix_hazards()
    hdr = f'''; {NAME}  (generated by work/gen.py)
; @launch kernel=attn_kernel grid=(256,1,1) block=(512,1,1) lds=163840
; @launch kernel=oproj_kernel grid=(256,1,1) block=(512,1,1) lds=163840
.amdgcn_target "amdgcn-amd-amdhsa--gfx950"
.text
'''
    txt = hdr + a1.text() + a2.text() + '.section .rodata,"a"\n' + descriptor('attn_kernel', 256, 102) + descriptor('oproj_kernel', 256, 102)
    open(out, 'w').write(txt)


if __name__ == '__main__':
    args = [x for x in sys.argv[1:] if not x.startswith('--')]
    main(args[0] if args else f'cdna_kernels/{NAME}.s')
```
